```python
import torch

def _softmax(x, axis=-1):
    return torch.softmax(x, dim=axis)
def _gelu(x):
    return torch.nn.functional.gelu(x, approximate="tanh")
def _silu(x):
    return torch.nn.functional.silu(x)
def _sigmoid(x):
    return torch.sigmoid(x)
def _layernorm(x, axis=-1, eps=1e-5):
    m = x.mean(dim=axis, keepdim=True)
    v = x.var(dim=axis, keepdim=True, unbiased=False)
    return (x - m) / torch.sqrt(v + eps)
def _scatter_add(tgt, idx, src, axis=0):
    return tgt.clone().index_add_(axis, idx, src)
def _segment_sum(src, seg, n):
    out = torch.zeros((n,) + src.shape[1:], dtype=src.dtype)
    return out.index_add_(0, seg, src)
def _pad(x, pw):
    flat = tuple(v for pair in reversed(pw) for v in pair)
    return torch.nn.functional.pad(x, flat)

kernel_name = 'interleave_layers__sliding_local_dilated__glu_gated_bilinear__prompt'

def setup_inputs():

    _w = (lambda a: (lambda t: t.to(torch.bfloat16) if t.is_floating_point() else t)(torch.as_tensor(a)))
    def _A_setup():
        B, S, D = 1, 2048, 640
        return {
            "x": _w((lambda *s: torch.randn(*s, dtype=torch.bfloat16) * 0.05)(B, S, D)),
            "wqkv": _w((lambda *s: torch.randn(*s, dtype=torch.bfloat16) * 0.05)(D, 3 * D)),
            "wo": _w((lambda *s: torch.randn(*s, dtype=torch.bfloat16) * 0.05)(D, D)),
        }
    _A_in = _A_setup()

    def _B_setup():
        B, S, D, F = 1, 2048, 640, 1728
        return {
            "x": _w((lambda *s: torch.randn(*s, dtype=torch.bfloat16) * 0.05)(B, S, D)),
            "w_gate": _w((lambda *s: torch.randn(*s, dtype=torch.bfloat16) * 0.8)(D, F) * (D ** -0.5)),
            "w_up": _w((lambda *s: torch.randn(*s, dtype=torch.bfloat16) * 0.8)(D, F) * (D ** -0.5)),
            "w_down": _w((lambda *s: torch.randn(*s, dtype=torch.bfloat16) * 0.8)(F, D) * (F ** -0.5)),
        }
    _B_in = _B_setup()

    return {
        "A_x": _A_in["x"],
        "A_wqkv": _A_in["wqkv"],
        "A_wo": _A_in["wo"],
        "B_x": _B_in["x"],
        "B_w_gate": _B_in["w_gate"],
        "B_w_up": _B_in["w_up"],
        "B_w_down": _B_in["w_down"],
    }

def reference(A_x, A_wqkv, A_wo, B_x, B_w_gate, B_w_up, B_w_down):
    def _A_ref(x, wqkv, wo):
        B, S, D = x.shape
        H = 32; Dh = D // H
        W, dil = 8, 2
        qkv = (lambda x, *d: x.permute(*d))((x @ wqkv).reshape(B, S, 3, H, Dh), 2, 0, 3, 1, 4)
        q, k, v = qkv[0], qkv[1], qkv[2]
        scale = Dh ** -0.5
        pos = torch.arange(S)
        off = torch.arange(W) * dil
        idx = pos[:, None] - off[None, :]
        mask = idx >= 0
        idx_c = torch.where(mask, idx, 0).reshape(-1)
        kg = k[:, :, idx_c, :].reshape(B, H, S, W, Dh)
        vg = v[:, :, idx_c, :].reshape(B, H, S, W, Dh)
        logits = torch.einsum("bhsd,bhswd->bhsw", q, kg) * scale
        logits = torch.where(mask[None, None, :, :], logits, -1e9)
        attn = _softmax(logits, axis=-1)
        o = torch.einsum("bhsw,bhswd->bhsd", attn, vg)
        return (lambda x, *d: x.permute(*d))(o, 0, 2, 1, 3).reshape(B, S, D) @ wo

    def _B_ref(x, w_gate, w_up, w_down):
        g = torch.einsum("bsd,df->bsf", x, w_gate)
        u = torch.einsum("bsd,df->bsf", x, w_up)
        h = g * u
        return torch.einsum("bsf,fd->bsd", h, w_down)

    x = A_x
    x = x + _A_ref(_layernorm(x, axis=-1), A_wqkv, A_wo)
    x = x + _B_ref(_layernorm(x, axis=-1), B_w_gate, B_w_up, B_w_down)
    x = x + _A_ref(_layernorm(x, axis=-1), A_wqkv, A_wo)
    x = x + _B_ref(_layernorm(x, axis=-1), B_w_gate, B_w_up, B_w_down)
    return x
```

```python
import sys
NAME = "interleave_layers__sliding_local_dilated__glu_gated_bilinear__prompt"
HDR = open('cdna_kernels/%s.s.ref' % NAME).read().split('\n')
HDR = [l for l in HDR if l.startswith(';') and '@launch' not in l and 'Override launch' not in l and 'grid=ceil' not in l]

WS = dict(WT_QKV=0x0, WT_O=0x400000, WT_G=0x500000, WT_U=0x800000, WT_D=0xB00000,
          XN=0x1000000, QKV=0x1400000, O=0x2000000, X1=0x2400000, H=0x2800000, X2=0x3000000)
ARG = dict(x=0, wqkv=8, wo=16, wg=32, wu=40, wd=48, out=56, ws=72)
S, D, F = 2048, 640, 1728
XB = S*D*2

out = []
kern = []
launch = []
def e(s): out.append('    ' + s)
def lab(s): out.append(s + ':')
def begin(name):
    out.append('.p2align 8'); out.append('.type %s,@function' % name); lab(name)
def srd(d, src, nbytes):
    pass
def load_ptr(d, src):
    kind, n = src
    e('s_load_dwordx2 s[%d:%d], s[0:1], %d' % (d, d+1, ARG[n] if kind == 'arg' else ARG['ws']))
def fin_srd(d, src, nbytes):
    kind, n = src
    if kind == 'ws':
        e('s_add_u32 s%d, s%d, 0x%x' % (d, d, WS[n])); e('s_addc_u32 s%d, s%d, 0' % (d+1, d+1))
    e('s_mov_b32 s%d, 0x%x' % (d+2, nbytes)); e('s_mov_b32 s%d, 0x20000' % (d+3))
def divmod_s(q, r, src, d, tmp):
    e('s_mov_b32 s%d, 0x%x' % (tmp, -(-(1 << 32)//d)))
    e('s_mul_hi_u32 s%d, s%d, s%d' % (q, src, tmp))
    e('s_mul_i32 s%d, s%d, %d' % (tmp, q, d))
    e('s_sub_u32 s%d, s%d, s%d' % (r, src, tmp))

def k_transpose(name, src, dst, K, N):
    nb = N//64; grid = (K//8)*nb
    begin(name)
    e('s_cmp_ge_u32 s2, %d' % grid); e('s_cbranch_scc1 %s_end' % name)
    load_ptr(4, src); load_ptr(8, dst)
    divmod_s(12, 13, 2, nb, 14)
    e('s_waitcnt lgkmcnt(0)')
    fin_srd(4, src, K*N*2); fin_srd(8, dst, K*N*2)
    e('s_lshl_b32 s13, s13, 6')
    e('v_add_u32 v1, s13, v0')
    e('v_lshlrev_b32 v2, 1, v1')
    e('s_mul_i32 s15, s12, %d' % (8*N*2))
    for j in range(8):
        e('buffer_load_ushort v%d, v2, s[4:7], s15 offen' % (8+j))
        e('s_add_u32 s15, s15, %d' % (N*2))
    e('s_mov_b32 s16, %d' % (K*2))
    e('v_mul_lo_u32 v3, v1, s16')
    e('s_lshl_b32 s17, s12, 4')
    e('s_waitcnt vmcnt(0)')
    for j in range(4):
        e('v_lshl_or_b32 v%d, v%d, 16, v%d' % (4+j, 9+2*j, 8+2*j))
    e('buffer_store_dwordx4 v[4:7], v3, s[8:11], s17 offen')
    lab(name + '_end'); e('s_endpgm')
    kern.append((name, 16)); return (name, grid, 64)

def wave_sum(v, tmp, addr):
    for x in (1, 2, 4, 8, 16, 32):
        e('v_xor_b32 v%d, %d, v0' % (addr, x)); e('v_lshlrev_b32 v%d, 2, v%d' % (addr, addr))
        e('ds_bpermute_b32 v%d, v%d, v%d' % (tmp, addr, v)); e('s_waitcnt lgkmcnt(0)')
        e('v_add_f32 v%d, v%d, v%d' % (v, v, tmp))

def k_ln(name, src, dst):
    begin(name)
    e('s_cmp_ge_u32 s2, %d' % S); e('s_cbranch_scc1 %s_end' % name)
    load_ptr(4, src); load_ptr(8, dst)
    e('s_waitcnt lgkmcnt(0)')
    fin_srd(4, src, XB); fin_srd(8, dst, XB)
    e('s_mul_i32 s12, s2, %d' % (D*2))
    e('v_lshlrev_b32 v1, 2, v0')
    for j in range(5): e('buffer_load_dword v%d, v1, s[4:7], s12 offen offset:%d' % (8+j, j*256))
    e('s_waitcnt vmcnt(0)')
    for j in range(5):
        e('v_lshlrev_b32 v%d, 16, v%d' % (16+2*j, 8+j)); e('v_and_b32 v%d, 0xffff0000, v%d' % (17+2*j, 8+j))
    e('v_mov_b32 v2, v16')
    for j in range(1, 10): e('v_add_f32 v2, v2, v%d' % (16+j))
    wave_sum(2, 3, 4)
    e('v_mul_f32 v2, 0x%08x, v2' % f32(1.0/D))
    e('v_mov_b32 v5, 0')
    for j in range(10):
        e('v_sub_f32 v%d, v%d, v2' % (16+j, 16+j)); e('v_fmac_f32 v5, v%d, v%d' % (16+j, 16+j))
    wave_sum(5, 3, 4)
    e('v_mul_f32 v5, 0x%08x, v5' % f32(1.0/D))
    e('v_add_f32 v5, 0x%08x, v5' % f32(1e-5))
    e('v_rsq_f32 v5, v5'); e('s_nop 1')
    for j in range(10): e('v_mul_f32 v%d, v%d, v5' % (16+j, 16+j))
    for j in range(5):
        e('v_cvt_pk_bf16_f32 v%d, v%d, v%d' % (8+j, 16+2*j, 17+2*j))
        e('buffer_store_dword v%d, v1, s[8:11], s12 offen offset:%d' % (8+j, j*256))
    lab(name + '_end'); e('s_endpgm')
    kern.append((name, 32)); return (name, S, 64)

import struct
def f32(x): return struct.unpack('<I', struct.pack('<f', x))[0]

def k_gemm(name, A, K, W, W2, N, dst, resid=None, scale=None):
    fpw = 32 if W2 else 64
    nb = N//fpw; grid = (S//32)*nb
    begin(name)
    e('s_cmp_ge_u32 s2, %d' % grid); e('s_cbranch_scc1 %s_end' % name)
    load_ptr(4, A); load_ptr(8, W); load_ptr(12, W2 if W2 else W); load_ptr(16, dst)
    load_ptr(20, resid if resid else dst)
    divmod_s(24, 25, 2, nb, 26)
    e('s_waitcnt lgkmcnt(0)')
    fin_srd(4, A, S*K*2); fin_srd(8, W, N*K*2); fin_srd(12, W2 if W2 else W, N*K*2); fin_srd(16, dst, S*N*2)
    fin_srd(20, resid if resid else dst, S*N*2)
    e('v_and_b32 v1, 15, v0'); e('v_lshrrev_b32 v2, 4, v0')
    e('s_mov_b32 s26, %d' % (K*2))
    e('v_mul_lo_u32 v3, v1, s26'); e('v_lshl_add_u32 v3, v2, 4, v3')
    e('s_mul_i32 s27, s24, %d' % (32*K*2))
    e('v_add_u32 v4, s27, v3'); e('v_add_u32 v5, %d, v4' % (16*K*2))
    e('s_mul_i32 s27, s25, %d' % (fpw*K*2))
    e('v_add_u32 v6, s27, v3'); e('v_add_u32 v7, %d, v6' % (16*K*2))
    if W2:
        e('v_mov_b32 v8, v6'); e('v_mov_b32 v9, v7')
    else:
        e('v_add_u32 v8, %d, v6' % (32*K*2)); e('v_add_u32 v9, %d, v6' % (48*K*2))
    for j in range(32): e('v_mov_b32 v%d, 0' % (40+j))
    e('s_mov_b32 s28, 0')
    lab(name + '_loop')
    e('buffer_load_dwordx4 v[12:15], v4, s[4:7], s28 offen')
    e('buffer_load_dwordx4 v[16:19], v5, s[4:7], s28 offen')
    e('buffer_load_dwordx4 v[20:23], v6, s[8:11], s28 offen')
    e('buffer_load_dwordx4 v[24:27], v7, s[8:11], s28 offen')
    e('buffer_load_dwordx4 v[28:31], v8, s[12:15], s28 offen')
    e('buffer_load_dwordx4 v[32:35], v9, s[12:15], s28 offen')
    e('s_waitcnt vmcnt(0)')
    for p in range(2):
        for f in range(4):
            c = 40 + (p*4+f)*4
            e('v_mfma_f32_16x16x32_bf16 v[%d:%d], v[%d:%d], v[%d:%d], v[%d:%d]' % (c, c+3, 20+4*f, 23+4*f, 12+4*p, 15+4*p, c, c+3))
    e('s_add_u32 s28, s28, 64'); e('s_cmp_lt_u32 s28, %d' % (K*2)); e('s_cbranch_scc1 %s_loop' % name)
    e('s_nop 15')
    e('s_mov_b32 s26, %d' % (N*2))
    e('v_mul_lo_u32 v3, v1, s26'); e('v_lshl_add_u32 v3, v2, 3, v3')
    e('s_mul_i32 s27, s24, %d' % (32*N*2)); e('s_mul_i32 s29, s25, %d' % (fpw*2)); e('s_add_u32 s27, s27, s29')
    e('v_add_u32 v4, s27, v3'); e('v_add_u32 v5, %d, v4' % (16*N*2))
    for p in range(2):
        for f in range(2 if W2 else 4):
            c = 40 + (p*4+f)*4
            if W2:
                for r in range(4): e('v_mul_f32 v%d, v%d, v%d' % (c+r, c+r, c+8+r))
            if resid:
                e('buffer_load_dwordx2 v[12:13], v%d, s[20:23], 0 offen offset:%d' % (4+p, f*32))
                e('s_waitcnt vmcnt(0)')
                e('v_lshlrev_b32 v14, 16, v12'); e('v_and_b32 v15, 0xffff0000, v12')
                e('v_lshlrev_b32 v16, 16, v13'); e('v_and_b32 v17, 0xffff0000, v13')
                for r in range(4): e('v_add_f32 v%d, v%d, v%d' % (c+r, c+r, 14+r))
            if scale is not None:
                for r in range(4): e('v_mul_f32 v%d, 0x%08x, v%d' % (c+r, f32(scale), c+r))
            e('v_cvt_pk_bf16_f32 v%d, v%d, v%d' % (c, c, c+1)); e('v_cvt_pk_bf16_f32 v%d, v%d, v%d' % (c+1, c+2, c+3))
            e('buffer_store_dwordx2 v[%d:%d], v%d, s[16:19], 0 offen offset:%d' % (c, c+1, 4+p, f*32))
    lab(name + '_end'); e('s_endpgm')
    kern.append((name, 72)); return (name, grid, 64)

def k_attn(name):
    grid = S*32//256
    src = ('ws', 'QKV'); dst = ('ws', 'O')
    begin(name)
    e('s_cmp_ge_u32 s2, %d' % grid); e('s_cbranch_scc1 %s_end' % name)
    load_ptr(4, src); load_ptr(8, dst)
    e('s_waitcnt lgkmcnt(0)')
    fin_srd(4, src, S*1920*2); fin_srd(8, dst, XB)
    e('s_lshl_b32 s12, s2, 3')
    e('v_lshrrev_b32 v1, 5, v0'); e('v_add_u32 v1, s12, v1')
    e('v_and_b32 v2, 31, v0'); e('v_mul_u32_u24 v2, 40, v2')
    e('s_mov_b32 s13, 3840')
    e('v_mul_lo_u32 v3, v1, s13'); e('v_add_u32 v3, v3, v2')
    def ld20(dst0, va, off):
        for j in range(5): e('buffer_load_dwordx2 v[%d:%d], v%d, s[4:7], 0 offen offset:%d' % (dst0+2*j, dst0+2*j+1, va, off+8*j))
    def unp(dst0, src0):
        for j in range(10):
            e('v_lshlrev_b32 v%d, 16, v%d' % (dst0+2*j, src0+j)); e('v_and_b32 v%d, 0xffff0000, v%d' % (dst0+2*j+1, src0+j))
    ld20(10, 3, 0); e('s_waitcnt vmcnt(0)'); unp(20, 10)
    for w in range(8):
        e('v_subrev_u32 v4, %d, v1' % (2*w)); e('v_max_i32 v5, 0, v4')
        e('v_mul_lo_u32 v5, v5, s13'); e('v_add_u32 v5, v5, v2')
        ld20(10, 5, 1280); e('s_waitcnt vmcnt(0)'); unp(40, 10)
        e('v_mul_f32 v%d, v20, v40' % (60+w))
        for j in range(1, 20): e('v_fmac_f32 v%d, v%d, v%d' % (60+w, 20+j, 40+j))
        e('v_mul_f32 v%d, 0x%08x, v%d' % (60+w, f32(20**-0.5*1.4426950408889634), 60+w))
        e('v_cmp_le_i32 vcc, 0, v4'); e('v_mov_b32 v6, 0x%08x' % f32(-1e9)); e('s_nop 1')
        e('v_cndmask_b32 v%d, v6, v%d, vcc' % (60+w, 60+w))
    e('v_mov_b32 v7, v60')
    for w in range(1, 8): e('v_max_f32 v7, v7, v%d' % (60+w))
    for w in range(8):
        e('v_sub_f32 v%d, v%d, v7' % (60+w, 60+w)); e('v_exp_f32 v%d, v%d' % (60+w, 60+w))
    e('s_nop 1'); e('v_mov_b32 v7, v60')
    for w in range(1, 8): e('v_add_f32 v7, v7, v%d' % (60+w))
    e('v_rcp_f32 v7, v7')
    for j in range(20): e('v_mov_b32 v%d, 0' % (20+j))
    for w in range(8):
        e('v_subrev_u32 v4, %d, v1' % (2*w)); e('v_max_i32 v5, 0, v4')
        e('v_mul_lo_u32 v5, v5, s13'); e('v_add_u32 v5, v5, v2')
        ld20(10, 5, 2560); e('s_waitcnt vmcnt(0)'); unp(40, 10)
        for j in range(20): e('v_fmac_f32 v%d, v%d, v%d' % (20+j, 60+w, 40+j))
    for j in range(20): e('v_mul_f32 v%d, v%d, v7' % (20+j, 20+j))
    for j in range(10): e('v_cvt_pk_bf16_f32 v%d, v%d, v%d' % (10+j, 20+2*j, 21+2*j))
    e('s_mov_b32 s13, 1280')
    e('v_mul_lo_u32 v3, v1, s13'); e('v_add_u32 v3, v3, v2')
    for j in range(5): e('buffer_store_dwordx2 v[%d:%d], v3, s[8:11], 0 offen offset:%d' % (10+2*j, 11+2*j, 8*j))
    lab(name + '_end'); e('s_endpgm')
    kern.append((name, 72)); return (name, grid, 256)

def k_empty(name):
    begin(name); e('s_endpgm'); kern.append((name, 8)); return (name, 256, 256)

def main(path, scale=None, nempty=0):
    w = lambda n: ('ws', n); a = lambda n: ('arg', n)
    t1 = k_transpose('t1_kernel', a('wqkv'), w('WT_QKV'), D, 1920)
    t2 = k_transpose('t2_kernel', a('wo'), w('WT_O'), D, D)
    t3 = k_transpose('t3_kernel', a('wg'), w('WT_G'), D, F)
    t4 = k_transpose('t4_kernel', a('wu'), w('WT_U'), D, F)
    t5 = k_transpose('t5_kernel', a('wd'), w('WT_D'), F, D)
    ln_a = k_ln('lna_kernel', a('x'), w('XN')); ln_b = k_ln('lnb_kernel', w('X1'), w('XN')); ln_c = k_ln('lnc_kernel', w('X2'), w('XN'))
    qkv = k_gemm('qkv_kernel', w('XN'), D, w('WT_QKV'), None, 1920, w('QKV'))
    att = k_attn('attn_kernel')
    wo1 = k_gemm('wo1_kernel', w('O'), D, w('WT_O'), None, D, w('X1'), resid=a('x'))
    wo2 = k_gemm('wo2_kernel', w('O'), D, w('WT_O'), None, D, w('X1'), resid=w('X2'))
    glu = k_gemm('glu_kernel', w('XN'), D, w('WT_G'), w('WT_U'), F, w('H'))
    dn1 = k_gemm('dn1_kernel', w('H'), F, w('WT_D'), None, D, w('X2'), resid=w('X1'))
    dn2 = k_gemm('dn2_kernel', w('H'), F, w('WT_D'), None, D, a('out'), resid=w('X1'), scale=scale)
    seq = [t1, t2, t3, t4, t5, ln_a, qkv, att, wo1, ln_b, glu, dn1, ln_c, qkv, att, wo2, ln_b, glu, dn2]
    if nempty:
        em = k_empty('empty_kernel'); seq += [em]*nempty
    txt = HDR[:]
    for n, g, b in seq: txt.append('; @launch kernel=%s grid=(%d,1,1) block=(%d,1,1) lds=0' % (n, g, b))
    txt += ['.amdgcn_target "amdgcn-amd-amdhsa--gfx950"', '.text'] + out
    txt += ['.section .rodata,"a"']
    for n, v in kern:
        txt += ['.p2align 6', '.amdhsa_kernel %s' % n, '  .amdhsa_next_free_vgpr %d' % v, '  .amdhsa_next_free_sgpr 40',
                '  .amdhsa_accum_offset %d' % v, '  .amdhsa_group_segment_fixed_size 0', '  .amdhsa_kernarg_size 80',
                '  .amdhsa_user_sgpr_count 2', '  .amdhsa_user_sgpr_kernarg_segment_ptr 1', '  .amdhsa_system_sgpr_workgroup_id_x 1',
                '.end_amdhsa_kernel']
    open(path, 'w').write('\n'.join(txt) + '\n')

if __name__ == '__main__':
    main(sys.argv[1], float(sys.argv[2]) if len(sys.argv) > 2 and sys.argv[2] != 'none' else None, int(sys.argv[3]) if len(sys.argv) > 3 else 0)
```
